```python
import torch

def _softmax(x, axis=-1):
    return torch.softmax(x, dim=axis)
def _gelu(x):
    return torch.nn.functional.gelu(x, approximate="tanh")
def _silu(x):
    return torch.nn.functional.silu(x)
def _sigmoid(x):
    return torch.sigmoid(x)
def _layernorm(x, axis=-1, eps=1e-5):
    m = x.mean(dim=axis, keepdim=True)
    v = x.var(dim=axis, keepdim=True, unbiased=False)
    return (x - m) / torch.sqrt(v + eps)
def _scatter_add(tgt, idx, src, axis=0):
    return tgt.clone().index_add_(axis, idx, src)
def _segment_sum(src, seg, n):
    out = torch.zeros((n,) + src.shape[1:], dtype=src.dtype)
    return out.index_add_(0, seg, src)
def _pad(x, pw):
    flat = tuple(v for pair in reversed(pw) for v in pair)
    return torch.nn.functional.pad(x, flat)

kernel_name = 'sequential_preLN__softmax_full_mha__dense_activation_gelu__prompt'

def setup_inputs():

    _w = (lambda a: (lambda t: t.to(torch.bfloat16) if t.is_floating_point() else t)(torch.as_tensor(a)))
    def _A_setup():
        B, S, D = 1, 2048, 512
        return {
            "x": _w((lambda *s: torch.randn(*s, dtype=torch.bfloat16) * 0.05)(B, S, D)),
            "wqkv": _w((lambda *s: torch.randn(*s, dtype=torch.bfloat16) * 0.05)(D, 3 * D)),
            "wo": _w((lambda *s: torch.randn(*s, dtype=torch.bfloat16) * 0.05)(D, D)),
        }
    _A_in = _A_setup()

    def _B_setup():
        B, S, D, F = 1, 2048, 512, 1792
        return {
            "x": _w((lambda *s: torch.randn(*s, dtype=torch.bfloat16) * 0.05)(B, S, D)),
            "w1": _w((lambda *s: torch.randn(*s, dtype=torch.bfloat16) * 0.8)(D, F) * (D ** -0.5)),
            "b1": _w((lambda *s: torch.randn(*s, dtype=torch.bfloat16) * 0.2)(F) * 0.01),
            "w2": _w((lambda *s: torch.randn(*s, dtype=torch.bfloat16) * 0.2)(F, D) * (F ** -0.5)),
            "b2": _w((lambda *s: torch.randn(*s, dtype=torch.bfloat16) * 0.2)(D) * 0.01),
        }
    _B_in = _B_setup()

    return {
        "A_x": _A_in["x"],
        "A_wqkv": _A_in["wqkv"],
        "A_wo": _A_in["wo"],
        "B_x": _B_in["x"],
        "B_w1": _B_in["w1"],
        "B_b1": _B_in["b1"],
        "B_w2": _B_in["w2"],
        "B_b2": _B_in["b2"],
    }

def reference(A_x, A_wqkv, A_wo, B_x, B_w1, B_b1, B_w2, B_b2):
    def _A_ref(x, wqkv, wo):
        B, S, D = x.shape
        H = 32; Dh = D // H
        qkv = (lambda x, *d: x.permute(*d))((x @ wqkv).reshape(B, S, 3, H, Dh), 2, 0, 3, 1, 4)
        q, k, v = qkv[0], qkv[1], qkv[2]
        scale = Dh ** -0.5
        scores = torch.einsum("bhqd,bhkd->bhqk", q, k) * scale
        p = _softmax(scores, axis=-1)
        o = torch.einsum("bhqk,bhkd->bhqd", p, v)
        return (lambda x, *d: x.permute(*d))(o, 0, 2, 1, 3).reshape(B, S, D) @ wo

    def _B_ref(x, w1, b1, w2, b2):
        h = torch.einsum("bsd,df->bsf", x, w1) + b1
        h = _gelu(h)
        return torch.einsum("bsf,fd->bsd", h, w2) + b2

    x = A_x
    h = x + _A_ref(_layernorm(x, axis=-1), A_wqkv, A_wo)
    h2 = h + _B_ref(_layernorm(h, axis=-1), B_w1, B_b1, B_w2, B_b2)
    return h2
```

```python
class Asm:
    def __init__(self):
        self.lines = []
        self._uid = 0
    def __call__(self, s=""):
        for l in s.split("\n"):
            l = l.rstrip()
            if l.strip():
                self.lines.append("  " + l.strip())
    def label(self, l):
        self.lines.append(l + ":")
    def raw(self, s):
        self.lines.append(s)
    def uid(self, p="L"):
        self._uid += 1
        return f"{p}_{self._uid}"
    def text(self):
        return "\n".join(self.lines) + "\n"

def vr(b, n=1):
    return f"v{b}" if n == 1 else f"v[{b}:{b+n-1}]"
def sr(b, n=1):
    return f"s{b}" if n == 1 else f"s[{b}:{b+n-1}]"

def srd(a, d, lo, hi, size, off=0):
    if off:
        a(f"s_add_u32 s{d}, s{lo}, {off}")
        a(f"s_addc_u32 s{d+1}, s{hi}, 0")
        a(f"s_and_b32 s{d+1}, s{d+1}, 0xffff")
    else:
        a(f"s_mov_b32 s{d}, s{lo}")
        a(f"s_and_b32 s{d+1}, s{hi}, 0xffff")
    a(f"s_mov_b32 s{d+2}, {size}")
    a(f"s_mov_b32 s{d+3}, 0x20000")

def kernel_header(name):
    return f""".globl {name}
.p2align 8
.type {name},@function
{name}:
"""

def kernel_desc(name, vgpr, sgpr=96, accum=None):
    total = vgpr
    if accum is None:
        accum = (vgpr + 3) // 4 * 4
    return f""".amdhsa_kernel {name}
  .amdhsa_next_free_vgpr {total}
  .amdhsa_next_free_sgpr {sgpr}
  .amdhsa_accum_offset {accum}
  .amdhsa_group_segment_fixed_size 0
  .amdhsa_kernarg_size 88
  .amdhsa_user_sgpr_count 2
  .amdhsa_user_sgpr_kernarg_segment_ptr 1
  .amdhsa_system_sgpr_workgroup_id_x 1
  .amdhsa_float_denorm_mode_32 3
  .amdhsa_float_denorm_mode_16_64 3
.end_amdhsa_kernel
"""
```

```python
import sys
from asmlib import *

NAME = "sequential_preLN__softmax_full_mha__dense_activation_gelu__prompt"
MB = 1 << 20
KA_X, KA_WQKV, KA_WO, KA_BX, KA_W1, KA_B1, KA_W2, KA_B2, KA_OUT, KA_DBG, KA_WS = [8 * i for i in range(11)]
WS_XN = 0
WS_QF = 2 * MB
WS_KF = 4 * MB
WS_VF = 6 * MB
WS_OF = 8 * MB
WS_HF = 10 * MB
WS_GF = 12 * MB
WS_NRM = 20 * MB
WS_CS1 = 20 * MB + 65536
WS_PS = 21 * MB

def f32bits(x):
    import struct
    return struct.unpack("<I", struct.pack("<f", x))[0]

def hexf(x):
    return f"0x{f32bits(x):08x}"

def prologue_ids(a, nwg, end_label):
    a(f"s_cmp_ge_u32 s2, {nwg}")
    a(f"s_cbranch_scc1 {end_label}")

def wave_lane(a, swave, vlane, vtmp):
    a(f"v_lshrrev_b32 v{vtmp}, 6, v0")
    a(f"v_and_b32 v{vlane}, 63, v0")
    a(f"v_readfirstlane_b32 s{swave}, v{vtmp}")

def emit_pi(a, dst, src, t1, t2):
    a(f"v_and_b32 v{t1}, 4, v{src}")
    a(f"v_and_b32 v{t2}, 8, v{src}")
    a(f"v_lshlrev_b32 v{t1}, 1, v{t1}")
    a(f"v_lshrrev_b32 v{t2}, 1, v{t2}")
    a(f"v_and_b32 v{dst}, 0xfffffff3, v{src}")
    a(f"v_or3_b32 v{dst}, v{dst}, v{t1}, v{t2}")

def emit_wfrag_addr(a, dst, lane, t1, t2, t3, fh_sgpr=None, fh_const=None):
    a(f"v_bfe_u32 v{t1}, v{lane}, 2, 2")
    a(f"v_lshrrev_b32 v{t2}, 5, v{lane}")
    a(f"v_lshl_add_u32 v{t2}, v{t2}, 3, v{t1}")
    a(f"v_lshlrev_b32 v{dst}, 7, v{t2}")
    a(f"v_bfe_u32 v{t2}, v{lane}, 4, 1")
    a(f"v_and_b32 v{t3}, 1, v{lane}")
    a(f"v_lshl_add_u32 v{t2}, v{t2}, 1, v{t3}")
    if fh_sgpr is not None:
        a(f"s_lshl_b32 s90, s{fh_sgpr}, 2")
        a(f"v_add_u32 v{t2}, s90, v{t2}")
    elif fh_const:
        a(f"v_add_u32 v{t2}, {4*fh_const}, v{t2}")
    a(f"v_lshrrev_b32 v{t1}, 1, v{t1}")
    a(f"v_lshlrev_b32 v{t1}, 2, v{t1}")
    a(f"v_xor_b32 v{t2}, v{t2}, v{t1}")
    a(f"v_lshl_add_u32 v{dst}, v{t2}, 4, v{dst}")
    a(f"v_bfe_u32 v{t3}, v{lane}, 1, 1")
    a(f"v_lshl_add_u32 v{dst}, v{t3}, 3, v{dst}")

def emit_wdma_voff(a, dst, lane, rowstride, t1, t2):
    a(f"v_lshrrev_b32 v{t1}, 3, v{lane}")
    a(f"s_mov_b32 s90, {rowstride}")
    a(f"v_mul_lo_u32 v{dst}, v{t1}, s90")
    a(f"v_bfe_u32 v{t1}, v{lane}, 4, 1")
    a(f"v_lshlrev_b32 v{t1}, 2, v{t1}")
    a(f"v_and_b32 v{t2}, 7, v{lane}")
    a(f"v_xor_b32 v{t1}, v{t1}, v{t2}")
    a(f"v_lshl_add_u32 v{dst}, v{t1}, 4, v{dst}")

def dpp_max16(a, v):
    for m in ("quad_perm:[1,0,3,2]", "quad_perm:[2,3,0,1]", "row_half_mirror", "row_mirror"):
        a("s_nop 1")
        a(f"v_max_f32_dpp v{v}, v{v}, v{v} {m} row_mask:0xf bank_mask:0xf")

def xhalf_add(a, v, t):
    a(f"v_mov_b32 v{t}, v{v}")
    a("s_nop 1")
    a(f"v_permlane32_swap_b32 v{v}, v{t}")
    a("s_nop 1")
    a(f"v_add_f32 v{v}, v{v}, v{t}")

def xhalf_max(a, v, t):
    a(f"v_mov_b32 v{t}, v{v}")
    a("s_nop 1")
    a(f"v_permlane32_swap_b32 v{v}, v{t}")
    a("s_nop 1")
    a(f"v_max_f32 v{v}, v{v}, v{t}")

def x16_max(a, v, t):
    a(f"v_mov_b32 v{t}, v{v}")
    a("s_nop 1")
    a(f"v_permlane16_swap_b32 v{v}, v{t}")
    a("s_nop 1")
    a(f"v_max_f32 v{v}, v{v}, v{t}")

def gen_k0():
    a = Asm()
    name = "k0_ln_kernel"
    a.raw(kernel_header(name))
    prologue_ids(a, 92, "K0_end")
    a(f"s_load_dwordx2 s[4:5], s[0:1], {KA_X}")
    a(f"s_load_dwordx2 s[6:7], s[0:1], {KA_W1}")
    a(f"s_load_dwordx2 s[20:21], s[0:1], {KA_WS}")
    wave_lane(a, 24, 1, 2)
    a("s_waitcnt lgkmcnt(0)")
    a("s_cmp_ge_u32 s2, 64")
    a("s_cbranch_scc1 K0_cs")
    srd(a, 8, 4, 5, 2 * MB)
    srd(a, 12, 20, 21, 2 * MB, WS_XN)
    a("s_lshl_b32 s25, s2, 2")
    a("s_add_u32 s25, s25, s24")
    a("s_lshl_b32 s25, s25, 3")
    a("v_lshrrev_b32 v2, 3, v1")
    a("v_and_b32 v3, 7, v1")
    a("v_add_u32 v4, s25, v2")
    a("v_lshlrev_b32 v5, 10, v4")
    a("v_lshl_add_u32 v5, v3, 4, v5")
    for j in range(8):
        a(f"buffer_load_dwordx4 v[{16+4*j}:{19+4*j}], v5, s[8:11], 0 offen offset:{128*j}")
    a("v_and_b32 v6, 31, v4")
    emit_pi(a, 7, 6, 8, 9)
    a("v_lshrrev_b32 v6, 5, v4")
    a("v_lshlrev_b32 v6, 15, v6")
    a("v_lshl_add_u32 v6, v7, 4, v6")
    a("v_lshrrev_b32 v7, 1, v3")
    a("v_lshl_add_u32 v6, v7, 10, v6")
    a("v_and_b32 v7, 1, v3")
    a("v_lshl_add_u32 v6, v7, 9, v6")
    a("v_mov_b32 v8, 0")
    a("v_mov_b32 v9, 0")
    a("s_mov_b32 s26, 0x3f803f80")
    a("s_waitcnt vmcnt(0)")
    for r in range(16, 48):
        a(f"v_dot2c_f32_bf16 v8, s26, v{r}")
        a(f"v_dot2c_f32_bf16 v9, v{r}, v{r}")
    a("s_nop 3")
    for m in ("quad_perm:[1,0,3,2]", "quad_perm:[2,3,0,1]", "row_half_mirror"):
        a("s_nop 1")
        a(f"v_add_f32_dpp v8, v8, v8 {m} row_mask:0xf bank_mask:0xf")
        a(f"v_add_f32_dpp v9, v9, v9 {m} row_mask:0xf bank_mask:0xf")
    a(f"v_mul_f32 v8, {hexf(1/512)}, v8")
    a(f"v_mul_f32 v9, {hexf(1/512)}, v9")
    a("v_fma_f32 v9, -v8, v8, v9")
    a("v_max_f32 v9, 0, v9")
    a(f"v_add_f32 v9, {hexf(1e-5)}, v9")
    a("v_rsq_f32 v9, v9")
    a("s_nop 0")
    a("v_mul_f32 v8, v8, v9")
    a("v_sub_f32 v8, 0, v8")
    for r in range(16, 48):
        a(f"v_lshlrev_b32 v10, 16, v{r}")
        a(f"v_and_b32 v11, 0xffff0000, v{r}")
        a(f"v_fma_f32 v10, v10, v9, v8")
        a(f"v_fma_f32 v11, v11, v9, v8")
        a(f"v_cvt_pk_bf16_f32 v{r}, v10, v11")
    for j in range(8):
        a(f"s_mov_b32 s27, {4096*j}")
        a(f"buffer_store_dwordx4 v[{16+4*j}:{19+4*j}], v6, s[12:15], s27 offen")
    a("s_waitcnt vmcnt(0)")
    a("s_endpgm")
    a.label("K0_cs")
    srd(a, 8, 6, 7, 512 * 3584)
    srd(a, 12, 20, 21, 1792 * 4, WS_CS1)
    a("s_sub_u32 s25, s2, 64")
    a("v_lshlrev_b32 v2, 2, v0")
    a("v_mov_b32 v3, 0")
    a("ds_write_b32 v2, v3")
    a("v_lshrrev_b32 v2, 3, v1")
    a("s_lshl_b32 s26, s24, 7")
    a("v_add_u32 v2, s26, v2")
    a("s_movk_i32 s27, 3584")
    a("v_mul_lo_u32 v2, v2, s27")
    a("v_and_b32 v3, 7, v1")
    a("v_lshl_add_u32 v2, v3, 4, v2")
    a("s_lshl_b32 s28, s25, 7")
    a("v_add_u32 v2, s28, v2")
    for i in range(8):
        a(f"v_mov_b32 v{8+i}, 0")
    for j in range(16):
        a(f"s_mov_b32 s29, {j*8*3584}")
        a(f"buffer_load_dwordx4 v[{16+4*j}:{19+4*j}], v2, s[8:11], s29 offen")
    a("s_waitcnt vmcnt(0)")
    for j in range(16):
        for q in range(4):
            r = 16 + 4 * j + q
            a(f"v_lshlrev_b32 v4, 16, v{r}")
            a(f"v_and_b32 v5, 0xffff0000, v{r}")
            a(f"v_add_f32 v{8+2*q}, v{8+2*q}, v4")
            a(f"v_add_f32 v{9+2*q}, v{9+2*q}, v5")
    a("s_waitcnt lgkmcnt(0)")
    a("s_barrier")
    a("v_lshlrev_b32 v3, 5, v3")
    for i in range(8):
        a(f"ds_add_f32 v3, v{8+i} offset:{4*i}")
    a("s_waitcnt lgkmcnt(0)")
    a("s_barrier")
    a("v_cmp_gt_u32 vcc, 64, v0")
    a("s_and_saveexec_b64 s[30:31], vcc")
    a("s_cbranch_execz K0_end")
    a("v_lshlrev_b32 v2, 2, v0")
    a("ds_read_b32 v3, v2")
    a("s_lshl_b32 s28, s25, 8")
    a("s_waitcnt lgkmcnt(0)")
    a("buffer_store_dword v3, v2, s[12:15], s28 offen")
    a("s_waitcnt vmcnt(0)")
    a.label("K0_end")
    a("s_endpgm")
    return name, a.text(), kernel_desc(name, 96), (92, 256, 1024)

class Ring:
    def __init__(self, a, nst, nbuf, per_stage, dma, compute, pre_outstanding_after=0):
        self.a, self.nst, self.nbuf, self.per, self.dma, self.compute = a, nst, nbuf, per_stage, dma, compute
    def run(self):
        a = self.a
        nst, nbuf, per = self.nst, self.nbuf, self.per
        npre = min(nbuf, nst)
        for s in range(npre):
            for g in self.dma(s):
                for l in g: a(l)
        issued = npre
        for s in range(nst):
            n = (issued - 1 - s) * per
            a(f"s_waitcnt vmcnt({min(n,63)})")
            a("s_barrier")
            groups = []
            if s >= 1 and issued < nst and issued - nbuf <= s - 1:
                groups = self.dma(issued)
                issued += 1
            self.compute(s, groups)

def dma_group(m0_sreg, m0_imm, voff, srd_base, soff_sreg, soff_imm, tmp):
    g = []
    g.append(f"s_add_u32 m0, s{m0_sreg}, {m0_imm}")
    g.append(f"s_add_u32 s{tmp}, s{soff_sreg}, {soff_imm}")
    g.append(f"buffer_load_dwordx4 v{voff}, s[{srd_base}:{srd_base+3}], s{tmp} offen lds")
    return g

CQ = 0.25 * 1.4426950408889634

def gen_k1(xcd_mode=0):
    a = Asm()
    name = "k1_qkv_kernel"
    a.raw(kernel_header(name))
    prologue_ids(a, 256, "K1_end")
    a(f"s_load_dwordx2 s[4:5], s[0:1], {KA_WQKV}")
    a(f"s_load_dwordx2 s[6:7], s[0:1], {KA_WS}")
    wave_lane(a, 24, 1, 2)
    a("s_and_b32 s27, s2, 7")
    a("s_lshr_b32 s28, s2, 3")
    if xcd_mode == 0:
        a("s_lshr_b32 s25, s27, 1")
        a("s_lshl_b32 s25, s25, 3")
        a("s_and_b32 s29, s28, 7")
        a("s_add_u32 s25, s25, s29")
        a("s_and_b32 s26, s27, 1")
        a("s_lshl_b32 s26, s26, 2")
        a("s_lshr_b32 s29, s28, 3")
        a("s_add_u32 s26, s26, s29")
    else:
        a("s_mov_b32 s26, s27")
        a("s_mov_b32 s25, s28")
    a("s_waitcnt lgkmcnt(0)")
    srd(a, 8, 6, 7, 2 * MB, WS_XN)
    srd(a, 12, 4, 5, 512 * 3072)
    srd(a, 16, 6, 7, 6 * MB, WS_QF)
    srd(a, 20, 6, 7, 16384, WS_NRM)
    a("s_and_b32 s30, s24, 1")
    a("s_lshr_b32 s31, s24, 1")
    STAGE = 32768
    a("v_lshlrev_b32 v2, 4, v1")
    emit_wdma_voff(a, 3, 1, 3072, 4, 5)
    a("s_lshl_b32 s32, s25, 1")
    a("s_add_u32 s32, s32, s31")
    a("s_lshl_b32 s32, s32, 5")
    a("s_lshl_b32 s33, s30, 1")
    a("s_add_u32 s32, s32, s33")
    a("s_lshl_b32 s32, s32, 10")
    a("s_lshl_b32 s33, s31, 12")
    a("s_lshl_b32 s34, s30, 11")
    a("s_add_u32 s33, s33, s34")
    a("s_mul_i32 s34, s24, 49152")
    a("s_lshl_b32 s35, s26, 7")
    a("s_add_u32 s34, s34, s35")
    a("s_lshl_b32 s35, s24, 11")

    def dma(s):
        buf = (s % 5) * STAGE
        gs = []
        for e in range(2):
            gs.append(dma_group(33, buf + e * 1024, 2, 8, 32, s * 4096 + e * 1024, 36))
        for t in range(3):
            for e in range(2):
                gs.append(dma_group(35, buf + 8192 * (1 + t) + e * 1024, 3, 12, 34,
                                    s * 64 * 3072 + t * 1024 + e * 8 * 3072, 36))
        return gs

    VX, VW = 4, 8
    a(f"s_lshl_b32 s37, s30, 12")
    a(f"v_add_u32 v{VX}, s37, v2")
    emit_wfrag_addr(a, VW, 1, 12, 13, 14, fh_sgpr=31)
    a(f"v_add_u32 v{VX+1}, 0x10000, v{VX}")
    a(f"v_add_u32 v{VX+2}, 0x20000, v{VX}")
    a(f"v_add_u32 v{VW+1}, 0x10000, v{VW}")
    a(f"v_add_u32 v{VW+2}, 0x20000, v{VW}")
    ACCQ, ACCK, ACCV = 16, 32, 48
    for r in range(16, 64):
        a(f"v_mov_b32 v{r}, 0")
    FR = 64

    def reads(s, ks, p):
        buf = (s % 5) * STAGE
        win, off = divmod(buf, 65536)
        b = FR + 16 * p
        L = [f"ds_read_b128 v[{b}:{b+3}], v{VX+win} offset:{off + ks*1024}"]
        for t in range(3):
            o = off + 8192 * (1 + t) + ks * 2048
            L.append(f"ds_read_b64_tr_b16 v[{b+4+4*t}:{b+5+4*t}], v{VW+win} offset:{o}")
            L.append(f"ds_read_b64_tr_b16 v[{b+6+4*t}:{b+7+4*t}], v{VW+win} offset:{o+512}")
        return L

    def compute(s, groups):
        groups = list(groups)
        for l in reads(s, 0, 0): a(l)
        for ks in range(4):
            p = ks & 1
            if ks < 3:
                for l in reads(s, ks + 1, p ^ 1): a(l)
                a("s_waitcnt lgkmcnt(7)")
            else:
                a("s_waitcnt lgkmcnt(0)")
            b = FR + 16 * p
            mf = [f"v_mfma_f32_32x32x16_bf16 v[{ACCQ}:{ACCQ+15}], v[{b+4}:{b+7}], v[{b}:{b+3}], v[{ACCQ}:{ACCQ+15}]",
                  f"v_mfma_f32_32x32x16_bf16 v[{ACCK}:{ACCK+15}], v[{b+8}:{b+11}], v[{b}:{b+3}], v[{ACCK}:{ACCK+15}]",
                  f"v_mfma_f32_32x32x16_bf16 v[{ACCV}:{ACCV+15}], v[{b}:{b+3}], v[{b+12}:{b+15}], v[{ACCV}:{ACCV+15}]"]
            for m in mf:
                a(m)
                if groups:
                    for l in groups.pop(0): a(l)
        for g in groups:
            for l in g: a(l)

    Ring(a, 8, 5, 8, dma, compute).run()

    a("s_nop 15")
    a("v_and_b32 v12, 31, v1")
    emit_pi(a, 13, 12, 14, 15)
    a("v_lshrrev_b32 v14, 5, v1")
    a("v_lshlrev_b32 v64, 9, v14")
    a("v_lshl_add_u32 v64, v13, 4, v64")
    a("s_lshl_b32 s38, s25, 1")
    a("s_add_u32 s38, s38, s30")
    a("s_lshl_b32 s39, s26, 2")
    a("s_lshl_b32 s40, s31, 1")
    a("s_add_u32 s39, s39, s40")
    a("s_lshl_b32 s40, s39, 16")
    a("s_lshl_b32 s41, s38, 10")
    a("s_add_u32 s40, s40, s41")
    a(f"s_mov_b32 s42, {hexf(CQ)}")
    for r in range(16):
        a(f"v_mul_f32 v{ACCQ+r}, s42, v{ACCQ+r}")
    def norms(acc, d0, d1):
        a(f"v_mul_f32 v{d0}, v{acc}, v{acc}")
        a(f"v_mul_f32 v{d1}, v{acc+8}, v{acc+8}")
        for r in range(1, 8):
            a(f"v_fmac_f32 v{d0}, v{acc+r}, v{acc+r}")
            a(f"v_fmac_f32 v{d1}, v{acc+8+r}, v{acc+8+r}")
    norms(ACCQ, 66, 67)
    norms(ACCK, 68, 69)
    a(f"v_max3_f32 v70, |v{ACCV}|, |v{ACCV+1}|, |v{ACCV+2}|")
    for r in range(3, 15, 2):
        a(f"v_max3_f32 v70, |v{ACCV+r}|, |v{ACCV+r+1}|, v70")
    a(f"v_max_f32 v70, |v{ACCV+15}|, v70")
    def pack_store(acc, soff_extra):
        for half in range(2):
            for q in range(4):
                a(f"v_cvt_pk_bf16_f32 v{72+q}, v{acc+8*half+2*q}, v{acc+8*half+2*q+1}")
            a(f"s_add_u32 s43, s40, {soff_extra + half*65536}")
            a(f"buffer_store_dwordx4 v[72:75], v64, s[16:19], s43 offen")
            a("s_nop 1")
    pack_store(ACCQ, 0)
    pack_store(ACCK, 2 * MB)
    a("v_bfe_u32 v65, v1, 4, 1")
    a("v_lshlrev_b32 v65, 16, v65")
    a("v_and_b32 v76, 15, v1")
    a("v_lshl_add_u32 v65, v76, 4, v65")
    a("v_lshl_add_u32 v65, v14, 8, v65")
    for half in range(2):
        for q in range(4):
            a(f"v_cvt_pk_bf16_f32 v{72+q}, v{ACCV+8*half+2*q}, v{ACCV+8*half+2*q+1}")
        a(f"s_add_u32 s43, s40, {4*MB + half*512}")
        a(f"buffer_store_dwordx4 v[72:75], v65, s[16:19], s43 offen")
        a("s_nop 1")
    for v in (66, 67, 68, 69):
        xhalf_add(a, v, 76)
    for v in (66, 67, 68, 69, 70):
        dpp_max16(a, v)
        x16_max(a, v, 76)
    xhalf_max(a, 70, 76)
    a(f"s_mov_b32 s44, {hexf(2.0**40)}")
    a("v_cmp_nle_f32 vcc, v70, s44")
    a("v_mov_b32 v76, 0x7f800000")
    a("s_nop 1")
    a("v_cndmask_b32 v68, v68, v76, vcc")
    a("v_cndmask_b32 v69, v69, v76, vcc")
    a("s_lshl_b32 s45, s39, 8")
    a("s_lshl_b32 s46, s38, 2")
    a("s_add_u32 s45, s45, s46")
    a("v_mov_b32 v77, 0")
    a("v_cmp_eq_u32 vcc, 0, v1")
    a("s_and_saveexec_b64 s[46:47], vcc")
    a("buffer_store_dword v66, v77, s[20:23], s45 offen")
    a("buffer_store_dword v67, v77, s[20:23], s45 offen offset:256")
    a("s_add_u32 s45, s45, 8192")
    a("buffer_store_dword v68, v77, s[20:23], s45 offen")
    a("buffer_store_dword v69, v77, s[20:23], s45 offen offset:256")
    a("s_waitcnt vmcnt(0)")
    a.label("K1_end")
    a("s_endpgm")
    return name, a.text(), kernel_desc(name, 96), (256, 256, 163840)

ATT_T = 60.0

def gen_k2():
    a = Asm()
    name = "k2_attn_kernel"
    a.raw(kernel_header(name))
    prologue_ids(a, 256, "K2_end")
    a(f"s_load_dwordx2 s[6:7], s[0:1], {KA_WS}")
    wave_lane(a, 24, 1, 2)
    a("s_and_b32 s27, s2, 7")
    a("s_lshr_b32 s28, s2, 3")
    a("s_lshr_b32 s25, s28, 3")
    a("s_lshl_b32 s26, s27, 2")
    a("s_add_u32 s25, s25, s26")
    a("s_and_b32 s26, s28, 7")
    a("s_waitcnt lgkmcnt(0)")
    srd(a, 8, 6, 7, 6 * MB, WS_QF)
    srd(a, 12, 6, 7, 2 * MB, WS_OF)
    srd(a, 16, 6, 7, 16384, WS_NRM)
    a("v_lshlrev_b32 v2, 4, v1")
    a("s_lshl_b32 s29, s25, 16")
    a("s_lshl_b32 s30, s26, 3")
    a("s_add_u32 s30, s30, s24")
    a("s_lshl_b32 s31, s30, 10")
    a("s_add_u32 s31, s31, s29")
    VQ = 4
    a(f"buffer_load_dwordx4 v[{VQ}:{VQ+3}], v2, s[8:11], s31 offen")
    a("v_lshlrev_b32 v3, 2, v1")
    a("s_lshl_b32 s32, s25, 8")
    a("s_add_u32 s33, s32, 8192")
    a("buffer_load_dword v8, v3, s[16:19], s33 offen")
    a("v_and_b32 v3, 7, v1")
    a("v_lshlrev_b32 v3, 2, v3")
    a("s_lshl_b32 s33, s26, 5")
    a("s_add_u32 s33, s33, s32")
    a("buffer_load_dword v9, v3, s[16:19], s33 offen")
    a("s_lshl_b32 s34, s24, 10")
    a("s_add_u32 s35, s29, s34")
    for c in range(8):
        for l in dma_group(34, c * 8192, 2, 8, 35, 2 * MB + c * 8192, 36): a(l)
        for l in dma_group(34, 65536 + c * 8192, 2, 8, 35, 4 * MB + c * 8192, 36): a(l)
    KF = 12
    VF = 20
    S0, S1 = 36, 52
    ACC = 68
    CM = 84
    IDX = 100
    VKA, VVA = 101, 102
    a(f"v_mov_b32 v{IDX}, 0xdddddddd")
    a(f"v_mov_b32 v{VKA}, v2")
    a("v_lshrrev_b32 v10, 5, v1")
    a("v_lshlrev_b32 v10, 8, v10")
    a("v_and_b32 v11, 15, v1")
    a("v_lshl_add_u32 v10, v11, 4, v10")
    a(f"v_add_u32 v{VVA}, 0x10000, v10")
    a("v_and_b32 v10, 27, v1")
    a("v_cmp_eq_u32 vcc, 16, v10")
    a("v_mov_b32 v11, 0x3f803f80")
    a("v_mov_b32 v10, 0")
    a("v_cndmask_b32 v10, v10, v11, vcc")
    for r in range(16):
        a(f"v_mov_b32 v{VF+r}, v10")
    for r in range(16):
        a(f"v_mov_b32 v{ACC+r}, 0")
        a(f"v_mov_b32 v{CM+r}, 0")
    a("s_mov_b32 s40, 0x0000ffff")
    a("s_mov_b32 s41, 0x0000ffff")
    a("s_waitcnt vmcnt(16)")
    dpp_max16(a, 8); x16_max(a, 8, 10); xhalf_max(a, 8, 10)
    dpp_max16(a, 9)
    a("s_nop 1")
    a("v_mul_f32 v8, v8, v9")
    a("s_nop 1")
    a("v_readfirstlane_b32 s42, v8")
    a(f"s_mov_b32 s43, {hexf(ATT_T*ATT_T)}")
    a("s_nop 3")
    a("s_cmp_le_u32 s42, s43")
    a("s_cbranch_scc1 K2_fast")
    a("s_waitcnt vmcnt(0)")
    a("s_barrier")
    a(f"v_mov_b32 v8, 0xff800000")
    a("s_mov_b32 s44, 0")
    a(f"v_mov_b32 v9, v{VKA}")
    a.label("K2_maxloop")
    a(f"ds_read_b128 v[{KF}:{KF+3}], v9")
    a("v_add_u32 v9, 1024, v9")
    a("s_waitcnt lgkmcnt(0)")
    a(f"v_mfma_f32_32x32x16_bf16 v[{S0}:{S0+15}], v[{KF}:{KF+3}], v[{VQ}:{VQ+3}], 0")
    a("s_nop 15")
    for r in range(0, 16, 2):
        a(f"v_max3_f32 v8, v{S0+r}, v{S0+r+1}, v8")
    a("s_add_u32 s44, s44, 1")
    a("s_cmp_lt_u32 s44, 64")
    a("s_cbranch_scc1 K2_maxloop")
    xhalf_max(a, 8, 10)
    a("v_sub_f32 v8, 0, v8")
    for r in range(16):
        a(f"v_mov_b32 v{CM+r}, v8")
    a.label("K2_fast")
    def kread(t):
        return f"ds_read_b128 v[{KF+4*(t%2)}:{KF+4*(t%2)+3}], v{VKA} offset:{t*1024}"
    def vreads(t):
        b = VF + 8 * (t % 2)
        return ["s_mov_b64 exec, s[40:41]",
                f"ds_read_b128 v[{b}:{b+3}], v{VVA} offset:{t*1024}",
                f"ds_read_b128 v[{b+4}:{b+7}], v{VVA} offset:{t*1024+512}",
                "s_mov_b64 exec, -1"]
    def qk(t):
        S = S0 if t % 2 == 0 else S1
        k = KF + 4 * (t % 2)
        return f"v_mfma_f32_32x32x16_bf16 v[{S}:{S+15}], v[{k}:{k+3}], v[{VQ}:{VQ+3}], v[{CM}:{CM+15}]"
    def chunk_sync(c):
        a(f"s_waitcnt vmcnt({2*(7-c)})")
        a("s_barrier")
    chunk_sync(0)
    a(kread(0)); a(kread(1))
    for l in vreads(0): a(l)
    a("s_waitcnt lgkmcnt(3)")
    a(qk(0))
    for t in range(64):
        S = S0 if t % 2 == 0 else S1
        if (t + 2) % 8 == 0 and t + 2 < 64:
            chunk_sync((t + 2) // 8)
        a("s_waitcnt lgkmcnt(0)")
        if t + 1 < 64:
            a(qk(t + 1))
        if t + 2 < 64:
            a(kread(t + 2))
        if t + 1 < 64:
            for l in vreads(t + 1): a(l)
        b = VF + 8 * (t % 2)
        if t == 0:
            a("s_nop 7")
        for r in range(8):
            a(f"v_exp_f32 v{S+r}, v{S+r}")
        a(f"v_exp_f32 v{S+8}, v{S+8}")
        a(f"v_exp_f32 v{S+9}, v{S+9}")
        a(f"v_smfmac_f32_32x32x32_bf16 v[{ACC}:{ACC+15}], v[{b}:{b+3}], v[{S}:{S+7}], v{IDX}")
        for r in range(10, 16):
            a(f"v_exp_f32 v{S+r}, v{S+r}")
        a("s_nop 1")
        a(f"v_smfmac_f32_32x32x32_bf16 v[{ACC}:{ACC+15}], v[{b+4}:{b+7}], v[{S+8}:{S+15}], v{IDX}")
    a("s_nop 15")
    a(f"v_rcp_f32 v8, v{ACC+8}")
    a("s_nop 0")
    for r in range(8):
        a(f"v_mul_f32 v{ACC+r}, v{ACC+r}, v8")
    for q in range(4):
        a(f"v_cvt_pk_bf16_f32 v{12+q}, v{ACC+2*q}, v{ACC+2*q+1}")
    a("s_lshl_b32 s45, s30, 5")
    a("s_add_u32 s45, s45, s25")
    a("s_lshl_b32 s45, s45, 10")
    a("buffer_store_dwordx4 v[12:15], v2, s[12:15], s45 offen")
    a("s_waitcnt vmcnt(0)")
    a.label("K2_end")
    a("s_endpgm")
    return name, a.text(), kernel_desc(name, 104), (256, 512, 131072)

def gen_gemm64(which):
    a = Asm()
    if which == "k3":
        name, P = "k3_oproj_kernel", "K3"
        nks, nst, nbuf = 32, 8, 8
        ws_tok, tok_size = WS_OF, 2 * MB
        ka_w, w_size = KA_WO, 512 * 1024
    else:
        name, P = "k5_ffn2_kernel", "K5"
        nks, nst, nbuf = 112, 28, 10
        ws_tok, tok_size = WS_GF, 64 * 112 * 1024
        ka_w, w_size = KA_W2, 1792 * 1024
    a.raw(kernel_header(name))
    prologue_ids(a, 256, f"{P}_end")
    a(f"s_load_dwordx2 s[4:5], s[0:1], {ka_w}")
    a(f"s_load_dwordx2 s[6:7], s[0:1], {KA_WS}")
    if which == "k3":
        a(f"s_load_dwordx2 s[48:49], s[0:1], {KA_X}")
    else:
        a(f"s_load_dwordx2 s[48:49], s[0:1], {KA_B2}")
        a(f"s_load_dwordx2 s[50:51], s[0:1], {KA_OUT}")
    wave_lane(a, 24, 1, 2)
    a("s_and_b32 s27, s2, 7")
    a("s_lshr_b32 s28, s2, 3")
    a("s_lshl_b32 s25, s27, 2")
    a("s_lshr_b32 s29, s28, 3")
    a("s_add_u32 s25, s25, s29")
    a("s_and_b32 s26, s28, 7")
    a("s_waitcnt lgkmcnt(0)")
    srd(a, 8, 6, 7, tok_size, ws_tok)
    srd(a, 12, 4, 5, w_size)
    srd(a, 16, 6, 7, 2 * MB, WS_HF)
    if which == "k3":
        srd(a, 20, 48, 49, 2 * MB)
        srd(a, 52, 6, 7, 2048 * 128, WS_PS)
    else:
        srd(a, 20, 48, 49, 1024)
        srd(a, 52, 50, 51, 2 * MB)
    a("s_and_b32 s30, s24, 1")
    a("s_lshr_b32 s31, s24, 1")
    STAGE = 16384
    a("v_lshlrev_b32 v2, 4, v1")
    emit_wdma_voff(a, 3, 1, 1024, 4, 5)
    a("s_lshl_b32 s32, s25, 1")
    a("s_add_u32 s32, s32, s31")
    a(f"s_mul_i32 s32, s32, {nks}")
    a("s_lshl_b32 s33, s30, 1")
    a("s_add_u32 s32, s32, s33")
    a("s_lshl_b32 s32, s32, 10")
    a("s_lshl_b32 s33, s31, 12")
    a("s_lshl_b32 s34, s30, 11")
    a("s_add_u32 s33, s33, s34")
    a("s_lshl_b32 s34, s24, 14")
    a("s_lshl_b32 s35, s26, 7")
    a("s_add_u32 s34, s34, s35")
    a("s_lshl_b32 s35, s24, 11")
    a("v_and_b32 v12, 31, v1")
    a("v_lshrrev_b32 v14, 5, v1")
    a("s_lshl_b32 s38, s25, 1")
    a("s_add_u32 s38, s38, s30")
    a("s_lshl_b32 s39, s26, 1")
    a("s_add_u32 s39, s39, s31")
    RES = 96
    a("v_lshlrev_b32 v15, 10, v12")
    a("v_lshl_add_u32 v15, v14, 4, v15")
    a("s_lshl_b32 s40, s38, 15")
    a("s_lshl_b32 s41, s39, 6")
    a("s_add_u32 s40, s40, s41")
    a("s_lshl_b32 s41, s38, 5")
    a("s_lshl_b32 s42, s39, 1")
    a("s_add_u32 s41, s41, s42")
    a("s_lshl_b32 s41, s41, 10")
    npre_loads = 0
    if which == "k3":
        a(f"buffer_load_dwordx4 v[{RES}:{RES+3}], v15, s[20:23], s40 offen")
        a(f"buffer_load_dwordx4 v[{RES+4}:{RES+7}], v15, s[20:23], s40 offen offset:32")
    else:
        a(f"buffer_load_dwordx4 v[{RES}:{RES+3}], v2, s[16:19], s41 offen")
        a(f"buffer_load_dwordx4 v[{RES+4}:{RES+7}], v2, s[16:19], s41 offen offset:1024")
        a("v_lshlrev_b32 v16, 4, v14")
        a("s_lshl_b32 s42, s39, 6")
        a(f"buffer_load_dwordx4 v[{RES+8}:{RES+11}], v16, s[20:23], s42 offen")
        a(f"buffer_load_dwordx4 v[{RES+12}:{RES+15}], v16, s[20:23], s42 offen offset:32")

    def dma(s):
        buf = (s % nbuf) * STAGE
        gs = []
        for e in range(2):
            gs.append(dma_group(33, buf + e * 1024, 2, 8, 32, s * 4096 + e * 1024, 36))
        for e in range(2):
            gs.append(dma_group(35, buf + 8192 + e * 1024, 3, 12, 34, s * 65536 + e * 8192, 36))
        return gs

    VX, VW = 4, 8
    a(f"s_lshl_b32 s37, s30, 12")
    a(f"v_add_u32 v{VX}, s37, v2")
    emit_wfrag_addr(a, VW, 1, 20, 21, 22, fh_sgpr=31)
    for wdw in (1, 2):
        a(f"v_add_u32 v{VX+wdw}, {wdw*65536}, v{VX}")
        a(f"v_add_u32 v{VW+wdw}, {wdw*65536}, v{VW}")
    ACC = 32
    for r in range(16):
        a(f"v_mov_b32 v{ACC+r}, 0")
    FR = 48

    def compute(s, groups):
        groups = list(groups)
        buf = (s % nbuf) * STAGE
        win, off = divmod(buf, 65536)
        for ks in range(4):
            b = FR + 8 * ks
            a(f"ds_read_b128 v[{b}:{b+3}], v{VX+win} offset:{off + ks*1024}")
            o = off + 8192 + ks * 2048
            a(f"ds_read_b64_tr_b16 v[{b+4}:{b+5}], v{VW+win} offset:{o}")
            a(f"ds_read_b64_tr_b16 v[{b+6}:{b+7}], v{VW+win} offset:{o+512}")
        for g in groups:
            for l in g: a(l)
        for ks in range(4):
            b = FR + 8 * ks
            a(f"s_waitcnt lgkmcnt({3*(3-ks)})")
            a(f"v_mfma_f32_32x32x16_bf16 v[{ACC}:{ACC+15}], v[{b+4}:{b+7}], v[{b}:{b+3}], v[{ACC}:{ACC+15}]")

    Ring(a, nst, nbuf, 4, dma, compute).run()

    a("s_nop 15")
    if which == "k3":
        for q in range(8):
            a(f"v_lshlrev_b32 v16, 16, v{RES+q}")
            a(f"v_and_b32 v17, 0xffff0000, v{RES+q}")
            a(f"v_add_f32 v{ACC+2*q}, v{ACC+2*q}, v16")
            a(f"v_add_f32 v{ACC+2*q+1}, v{ACC+2*q+1}, v17")
        for q in range(8):
            a(f"v_cvt_pk_bf16_f32 v{FR+q}, v{ACC+2*q}, v{ACC+2*q+1}")
        a(f"buffer_store_dwordx4 v[{FR}:{FR+3}], v2, s[16:19], s41 offen")
        a(f"buffer_store_dwordx4 v[{FR+4}:{FR+7}], v2, s[16:19], s41 offen offset:1024")
        a("v_mov_b32 v16, 0")
        a("v_mov_b32 v17, 0")
        a("s_mov_b32 s43, 0x3f803f80")
        for q in range(8):
            a(f"v_dot2c_f32_bf16 v16, s43, v{FR+q}")
            a(f"v_dot2c_f32_bf16 v17, v{FR+q}, v{FR+q}")
        a("s_nop 3")
        xhalf_add(a, 16, 18)
        xhalf_add(a, 17, 18)
        a("v_lshlrev_b32 v18, 7, v12")
        a("s_lshl_b32 s44, s38, 12")
        a("s_lshl_b32 s45, s39, 3")
        a("s_add_u32 s44, s44, s45")
        a("v_cmp_gt_u32 vcc, 32, v1")
        a("s_and_saveexec_b64 s[46:47], vcc")
        a("buffer_store_dwordx2 v[16:17], v18, s[52:55], s44 offen")
    else:
        for q in range(8):
            a(f"v_lshlrev_b32 v16, 16, v{RES+q}")
            a(f"v_and_b32 v17, 0xffff0000, v{RES+q}")
            a(f"v_lshlrev_b32 v18, 16, v{RES+8+q}")
            a(f"v_and_b32 v19, 0xffff0000, v{RES+8+q}")
            a(f"v_add_f32 v{ACC+2*q}, v{ACC+2*q}, v18")
            a(f"v_add_f32 v{ACC+2*q+1}, v{ACC+2*q+1}, v19")
            a(f"v_add_f32 v{ACC+2*q}, v{ACC+2*q}, v16")
            a(f"v_add_f32 v{ACC+2*q+1}, v{ACC+2*q+1}, v17")
        for q in range(8):
            a(f"v_cvt_pk_bf16_f32 v{FR+q}, v{ACC+2*q}, v{ACC+2*q+1}")
        a(f"buffer_store_dwordx4 v[{FR}:{FR+3}], v15, s[52:55], s40 offen")
        a(f"buffer_store_dwordx4 v[{FR+4}:{FR+7}], v15, s[52:55], s40 offen offset:32")
    a("s_waitcnt vmcnt(0)")
    a.label(f"{P}_end")
    a("s_endpgm")
    return name, a.text(), kernel_desc(name, 112), (256, 256, nbuf * STAGE)

def gen_k4():
    a = Asm()
    name, P = "k4_ffn1_kernel", "K4"
    a.raw(kernel_header(name))
    prologue_ids(a, 224, f"{P}_end")
    a(f"s_load_dwordx2 s[4:5], s[0:1], {KA_W1}")
    a(f"s_load_dwordx2 s[6:7], s[0:1], {KA_WS}")
    a(f"s_load_dwordx2 s[48:49], s[0:1], {KA_B1}")
    wave_lane(a, 24, 1, 2)
    a("s_and_b32 s27, s2, 7")
    a("s_lshr_b32 s28, s2, 3")
    a("s_cmp_ge_u32 s28, 14")
    a("s_cselect_b32 s29, 1, 0")
    a("s_lshl_b32 s25, s27, 1")
    a("s_add_u32 s25, s25, s29")
    a("s_mul_i32 s29, s29, 14")
    a("s_sub_u32 s26, s28, s29")
    a("s_waitcnt lgkmcnt(0)")
    srd(a, 8, 6, 7, 2 * MB, WS_HF)
    srd(a, 12, 4, 5, 512 * 3584)
    srd(a, 16, 6, 7, 64 * 112 * 1024, WS_GF)
    srd(a, 20, 48, 49, 3584)
    srd(a, 52, 6, 7, 2048 * 128, WS_PS)
    srd(a, 56, 6, 7, 1792 * 4, WS_CS1)
    a("s_and_b32 s30, s24, 1")
    a("s_lshr_b32 s31, s24, 1")
    STAGE = 32768
    a("v_lshlrev_b32 v2, 4, v1")
    emit_wdma_voff(a, 3, 1, 3584, 4, 5)
    a("s_lshl_b32 s32, s25, 2")
    a("s_add_u32 s32, s32, s31")
    a("s_lshl_b32 s32, s32, 5")
    a("s_lshl_b32 s33, s30, 1")
    a("s_add_u32 s32, s32, s33")
    a("s_lshl_b32 s32, s32, 10")
    a("s_lshl_b32 s33, s31, 12")
    a("s_lshl_b32 s34, s30, 11")
    a("s_add_u32 s33, s33, s34")
    a("s_and_b32 s36, s24, 3")
    a("s_lshr_b32 s37, s24, 2")
    a(f"s_mul_i32 s34, s36, {16*3584}")
    a("s_lshl_b32 s35, s37, 7")
    a("s_add_u32 s34, s34, s35")
    a("s_lshl_b32 s35, s26, 8")
    a("s_add_u32 s34, s34, s35")
    a("s_lshl_b32 s35, s36, 11")
    a("s_lshl_b32 s36, s37, 13")
    a("s_add_u32 s35, s35, s36")
    a("v_and_b32 v12, 31, v1")
    a("v_lshrrev_b32 v14, 5, v1")
    a("s_lshl_b32 s38, s25, 2")
    a("s_lshl_b32 s39, s30, 1")
    a("s_add_u32 s38, s38, s39")
    a("s_lshl_b32 s39, s26, 2")
    a("s_add_u32 s39, s39, s31")
    PSR = 96
    CSR = 128
    B1R = 144
    a("v_lshlrev_b32 v15, 7, v12")
    a("v_lshl_add_u32 v15, v14, 6, v15")
    for tt in range(2):
        a(f"s_add_u32 s40, s38, {tt}")
        a("s_lshl_b32 s40, s40, 12")
        for q in range(4):
            a(f"buffer_load_dwordx4 v[{PSR+16*tt+4*q}:{PSR+16*tt+4*q+3}], v15, s[52:55], s40 offen offset:{16*q}")
    a("v_lshlrev_b32 v16, 5, v14")
    a("s_lshl_b32 s40, s39, 7")
    for q in range(2):
        a(f"buffer_load_dwordx4 v[{CSR+4*q}:{CSR+4*q+3}], v16, s[56:59], s40 offen offset:{16*q}")
        a(f"buffer_load_dwordx4 v[{CSR+8+4*q}:{CSR+8+4*q+3}], v16, s[56:59], s40 offen offset:{64+16*q}")
    a("v_lshlrev_b32 v16, 4, v14")
    a("s_lshl_b32 s40, s39, 6")
    a(f"buffer_load_dwordx4 v[{B1R}:{B1R+3}], v16, s[20:23], s40 offen")
    a(f"buffer_load_dwordx4 v[{B1R+4}:{B1R+7}], v16, s[20:23], s40 offen offset:32")

    def dma(s):
        buf = (s % 5) * STAGE
        gs = []
        for e in range(2):
            gs.append(dma_group(33, buf + e * 1024, 2, 8, 32, s * 4096 + e * 1024, 36))
        for e in range(2):
            gs.append(dma_group(35, buf + 16384 + e * 1024, 3, 12, 34, s * 64 * 3584 + e * 8 * 3584, 36))
        return gs

    VX, VW = 4, 8
    a(f"s_lshl_b32 s37, s30, 13")
    a(f"v_add_u32 v{VX}, s37, v2")
    a("s_and_b32 s37, s31, 1")
    emit_wfrag_addr(a, VW, 1, 20, 21, 22, fh_sgpr=37)
    a("s_lshr_b32 s37, s31, 1")
    a("s_lshl_b32 s37, s37, 13")
    a(f"v_add_u32 v{VW}, s37, v{VW}")
    for wdw in (1, 2):
        a(f"v_add_u32 v{VX+wdw}, {wdw*65536}, v{VX}")
        a(f"v_add_u32 v{VW+wdw}, {wdw*65536}, v{VW}")
    ACC = 32
    for r in range(32):
        a(f"v_mov_b32 v{ACC+r}, 0")
    FR = 64

    def reads(s, ks, p):
        buf = (s % 5) * STAGE
        win, off = divmod(buf, 65536)
        b = FR + 16 * p
        o = off + 16384 + ks * 2048
        return [f"ds_read_b128 v[{b}:{b+3}], v{VX+win} offset:{off + ks*1024}",
                f"ds_read_b128 v[{b+4}:{b+7}], v{VX+win} offset:{off + 4096 + ks*1024}",
                f"ds_read_b64_tr_b16 v[{b+8}:{b+9}], v{VW+win} offset:{o}",
                f"ds_read_b64_tr_b16 v[{b+10}:{b+11}], v{VW+win} offset:{o+512}"]

    def compute(s, groups):
        groups = list(groups)
        for l in reads(s, 0, 0): a(l)
        for ks in range(4):
            p = ks & 1
            if ks < 3:
                for l in reads(s, ks + 1, p ^ 1): a(l)
                a("s_waitcnt lgkmcnt(4)")
            else:
                a("s_waitcnt lgkmcnt(0)")
            b = FR + 16 * p
            for tt in range(2):
                a(f"v_mfma_f32_32x32x16_bf16 v[{ACC+16*tt}:{ACC+16*tt+15}], v[{b+8}:{b+11}], v[{b+4*tt}:{b+4*tt+3}], v[{ACC+16*tt}:{ACC+16*tt+15}]")
                if groups:
                    for l in groups.pop(0): a(l)
        for g in groups:
            for l in g: a(l)

    Ring(a, 8, 5, 4, dma, compute).run()

    a("s_nop 15")
    BB = 64
    for q in range(8):
        a(f"v_lshlrev_b32 v{BB+2*q}, 16, v{B1R+q}")
        a(f"v_and_b32 v{BB+2*q+1}, 0xffff0000, v{B1R+q}")
    C1 = -2.0 * 0.7978845608028654 * 1.4426950408889634
    C2 = C1 * 0.044715
    a(f"s_mov_b32 s60, {hexf(C1)}")
    a(f"s_mov_b32 s61, {hexf(C2)}")
    for tt in range(2):
        b = PSR + 16 * tt
        a(f"v_add_f32 v16, v{b}, v{b+2}")
        a(f"v_add_f32 v17, v{b+1}, v{b+3}")
        for q in range(2, 8):
            a(f"v_add_f32 v16, v16, v{b+2*q}")
            a(f"v_add_f32 v17, v17, v{b+2*q+1}")
        xhalf_add(a, 16, 18)
        xhalf_add(a, 17, 18)
        a(f"v_mul_f32 v16, {hexf(1/512)}, v16")
        a(f"v_mul_f32 v17, {hexf(1/512)}, v17")
        a("v_fma_f32 v17, -v16, v16, v17")
        a("v_max_f32 v17, 0, v17")
        a(f"v_add_f32 v17, {hexf(1e-5)}, v17")
        a("v_rsq_f32 v17, v17")
        a("s_nop 0")
        a("v_mul_f32 v16, v16, v17")
        a("v_sub_f32 v16, 0, v16")
        acc = ACC + 16 * tt
        for r in range(16):
            x = acc + r
            a(f"v_fma_f32 v18, v16, v{CSR+r}, v{BB+r}")
            a(f"v_fma_f32 v{x}, v{x}, v17, v18")
            a(f"v_mul_f32 v19, v{x}, v{x}")
            a(f"v_mov_b32 v20, s60")
            a(f"v_fma_f32 v19, v19, s61, v20")
            a(f"v_mul_f32 v19, v19, v{x}")
            a(f"v_exp_f32 v19, v19")
            a("s_nop 0")
            a(f"v_add_f32 v19, 1.0, v19")
            a(f"v_rcp_f32 v19, v19")
            a("s_nop 0")
            a(f"v_mul_f32 v{x}, v{x}, v19")
        for q in range(8):
            a(f"v_cvt_pk_bf16_f32 v{80+q}, v{acc+2*q}, v{acc+2*q+1}")
        a(f"s_add_u32 s40, s38, {tt}")
        a("s_mul_i32 s40, s40, 112")
        a("s_lshl_b32 s41, s39, 1")
        a("s_add_u32 s40, s40, s41")
        a("s_lshl_b32 s40, s40, 10")
        a(f"buffer_store_dwordx4 v[80:83], v2, s[16:19], s40 offen")
        a(f"buffer_store_dwordx4 v[84:87], v2, s[16:19], s40 offen offset:1024")
        a("s_nop 1")
    a("s_waitcnt vmcnt(0)")
    a.label(f"{P}_end")
    a("s_endpgm")
    return name, a.text(), kernel_desc(name, 152), (224, 512, 163840)

def build(kernels=None):
    ks = [gen_k0(), gen_k1(), gen_k2(), gen_gemm64("k3"), gen_k4(), gen_gemm64("k5")]
    hdr = []
    for name, text, desc, (g, b, lds) in ks:
        hdr.append(f"; @launch kernel={name} grid=({g},1,1) block=({b},1,1) lds={lds}")
    out = "\n".join(hdr) + "\n"
    out += '.amdgcn_target "amdgcn-amd-amdhsa--gfx950"\n.text\n'
    for name, text, desc, _ in ks:
        out += text
    out += '.section .rodata,"a"\n'
    for name, text, desc, _ in ks:
        out += ".p2align 6\n" + desc
    return out

if __name__ == "__main__":
    path = sys.argv[1] if len(sys.argv) > 1 else f"cdna_kernels/{NAME}.s"
    hdr = open(f"cdna_kernels/{NAME}.s.ref").read().split("\n")
    comments = [l for l in hdr if l.startswith(";") and "@launch" not in l and "Override" not in l and "grid=ceil" not in l]
    open(path, "w").write("\n".join(comments) + "\n" + build())
    print("wrote", path)
```
